```python
import torch

def _softmax(x, axis=-1):
    return torch.softmax(x, dim=axis)

def _gelu(x):
    return torch.nn.functional.gelu(x, approximate='tanh')

def _silu(x):
    return torch.nn.functional.silu(x)

def _sigmoid(x):
    return torch.sigmoid(x)

def _layernorm(x, axis=-1, eps=1e-05):
    m = x.mean(dim=axis, keepdim=True)
    v = x.var(dim=axis, keepdim=True, unbiased=False)
    return (x - m) / torch.sqrt(v + eps)

def _scatter_add(tgt, idx, src, axis=0):
    return tgt.clone().index_add_(axis, idx, src)

def _segment_sum(src, seg, n):
    out = torch.zeros((n,) + src.shape[1:], dtype=src.dtype)
    return out.index_add_(0, seg, src)

def _pad(x, pw):
    flat = tuple((v for pair in reversed(pw) for v in pair))
    return torch.nn.functional.pad(x, flat)
kernel_name = 'adaLN_cond__mha_block__dense_activation_silu__prompt'

def setup_inputs():

    _w = lambda a: (lambda t: t.to(torch.bfloat16) if t.is_floating_point() else t)(torch.as_tensor(a))

    def _A_setup():
        B, S, D, H = (1, 2048, 576, 32)
        return {'x': _w((lambda *s: torch.randn(*s, dtype=torch.bfloat16) * 0.05)(B, S, D)), 'wqkv': _w((lambda *s: torch.randn(*s, dtype=torch.bfloat16) * 0.05)(D, 3 * D)), 'wo': _w((lambda *s: torch.randn(*s, dtype=torch.bfloat16) * 0.05)(D, D))}
    _A_in = _A_setup()

    def _B_setup():
        B, S, D, F = (1, 2048, 576, 4608)
        return {'x': _w((lambda *s: torch.randn(*s, dtype=torch.bfloat16) * 0.05)(B, S, D)), 'w1': _w((lambda *s: torch.randn(*s, dtype=torch.bfloat16) * 3.2)(D, F) * D ** (-0.5)), 'w2': _w((lambda *s: torch.randn(*s, dtype=torch.bfloat16) * 0.4)(F, D) * F ** (-0.5))}
    _B_in = _B_setup()
    return {'A_x': _A_in['x'], 'A_wqkv': _A_in['wqkv'], 'A_wo': _A_in['wo'], 'B_x': _B_in['x'], 'B_w1': _B_in['w1'], 'B_w2': _B_in['w2'], 'c': _w((lambda *s: torch.randn(*s, dtype=torch.bfloat16) * 0.1)(1, 576) * 8.0), 'w_mod': _w((lambda *s: torch.randn(*s, dtype=torch.bfloat16) * 0.1)(576, 6 * 576) * 576 ** (-0.5) * 8.0)}

def reference(A_x, A_wqkv, A_wo, B_x, B_w1, B_w2, c, w_mod):

    def _A_ref(x, wqkv, wo):
        B, S, D = x.shape
        H = 32
        Dh = D // H
        qkv = (lambda x, *d: x.permute(*d))((x @ wqkv).reshape(B, S, 3, H, Dh), 2, 0, 3, 1, 4)
        q, k, v = (qkv[0], qkv[1], qkv[2])
        scores = torch.einsum('bhqd,bhkd->bhqk', q, k) * Dh ** (-0.5)
        p = _softmax(scores, axis=-1)
        o = torch.einsum('bhqk,bhkd->bhqd', p, v)
        return (lambda x, *d: x.permute(*d))(o, 0, 2, 1, 3).reshape(B, S, D) @ wo

    def _B_ref(x, w1, w2):
        h = torch.einsum('bsd,df->bsf', x, w1)
        h = _silu(h)
        out = torch.einsum('bsf,fd->bsd', h, w2)
        return out
    x = A_x
    mod = (_silu(c) @ w_mod).reshape(c.shape[0], 6, 1, -1)
    sa, ca, ga, sb, cb, gb = (mod[:, 0].clone(), mod[:, 1].clone(), mod[:, 2].clone(), mod[:, 3].clone(), mod[:, 4].clone(), mod[:, 5].clone())
    h = _layernorm(x, axis=-1) * (1 + ca) + sa
    x = x + ga * _A_ref(h, A_wqkv, A_wo)
    h = _layernorm(x, axis=-1) * (1 + cb) + sb
    x = x + gb * _B_ref(h, B_w1, B_w2)
    return x
```

```python
class Asm:
    def __init__(self):
        self.lines = []
        self.uid = 0
    def __call__(self, s=""):
        for ln in s.split("\n"):
            ln = ln.strip()
            if ln == "":
                continue
            if ln.endswith(":") or ln.startswith("."):
                self.lines.append(ln)
            else:
                self.lines.append("    " + ln)
    def label(self, base):
        self.uid += 1
        return f"L_{base}_{self.uid}"
    def text(self):
        return "\n".join(self.lines) + "\n"

def vr(a, n=1):
    return f"v{a}" if n == 1 else f"v[{a}:{a+n-1}]"
def ar(a, n=1):
    return f"a{a}" if n == 1 else f"a[{a}:{a+n-1}]"
def sr(a, n=1):
    return f"s{a}" if n == 1 else f"s[{a}:{a+n-1}]"
def ur(a, n=1):
    if a < 256:
        assert a + n <= 256
        return vr(a, n)
    return ar(a - 256, n)

KA = dict(x=0, wqkv=8, wo=16, bx=24, w1=32, w2=40, c=48, wmod=56, out=64, dbg=72, ws=80)

T, D, F, H, DH = 2048, 576, 4608, 32, 18
def _layout():
    off = 0
    L = {}
    def add(name, size):
        nonlocal off
        L[name] = (off, size)
        off += (size + 4095) // 4096 * 4096
    add('modp', 4 * 3456 * 4)
    add('xh', T * D * 2)
    add('wqkv', 12 * 162 * 1024)
    add('wo', 4 * 162 * 1024)
    add('w1', 8 * 12 * 54 * 1024)
    add('w2', 8 * 12 * 54 * 1024)
    add('q1', 32 * 64 * 1024)
    add('q2', 32 * 2048 * 4)
    add('kv', 32 * 64 * 2432)
    add('of', T * D * 2)
    add('x2', T * D * 2)
    add('st', 12 * T * 8)
    add('modr', 3456 * 4)
    add('part', 8 * T * D * 2)
    return L
WS = _layout()
SIZES = dict(x=T*D*2, wqkv=D*3*D*2, wo=D*D*2, w1=D*F*2, w2=F*D*2, c=D*2, wmod=D*6*D*2, out=T*D*2)

def kernel_begin(a, name):
    a(f".text\n.globl {name}\n.p2align 8\n.type {name},@function\n{name}:")
def kernel_end(a, name, vgprs, sgprs=102):
    if vgprs <= 256:
        acc = (vgprs + 3) // 4 * 4
        nfv = vgprs
    else:
        acc = 256
        nfv = vgprs
    a(f"""s_endpgm
.section .rodata,"a"
.p2align 6
.amdhsa_kernel {name}
.amdhsa_next_free_vgpr {nfv}
.amdhsa_next_free_sgpr {sgprs}
.amdhsa_accum_offset {acc}
.amdhsa_group_segment_fixed_size 0
.amdhsa_kernarg_size 88
.amdhsa_user_sgpr_count 2
.amdhsa_user_sgpr_kernarg_segment_ptr 1
.amdhsa_system_sgpr_workgroup_id_x 1
.end_amdhsa_kernel""")

def load_ptr(a, sdst, name):
    a(f"s_load_dwordx2 {sr(sdst,2)}, s[0:1], {KA[name]}")
def srd_in(a, q, p, name):
    a(f"s_mov_b32 s{q}, s{p}")
    a(f"s_and_b32 s{q+1}, s{p+1}, 0xffff")
    a(f"s_mov_b32 s{q+2}, {SIZES[name]}")
    a(f"s_mov_b32 s{q+3}, 0x20000")
def srd_ws(a, q, p, name):
    off, size = WS[name]
    a(f"s_add_u32 s{q}, s{p}, {off}")
    a(f"s_addc_u32 s{q+1}, s{p+1}, 0")
    a(f"s_and_b32 s{q+1}, s{q+1}, 0xffff")
    a(f"s_mov_b32 s{q+2}, {size}")
    a(f"s_mov_b32 s{q+3}, 0x20000")

import os
STAMPS = os.environ.get('STAMPS', '')
STAMP_OFF = 128 << 20
def stamp(a, kname, i):
    if STAMPS == kname:
        a(f"s_memtime s[{70+2*i}:{71+2*i}]")
def stamp_flush(a, kname, n, swave, waves_per_wg, ws_pair=4, vtmp=250):
    if STAMPS != kname:
        return
    a("s_waitcnt lgkmcnt(0)")
    a(f"s_add_u32 s96, s{ws_pair}, {STAMP_OFF}")
    a(f"s_addc_u32 s97, s{ws_pair+1}, 0")
    a("s_and_b32 s97, s97, 0xffff")
    a(f"s_mov_b32 s98, {1<<22}")
    a("s_mov_b32 s99, 0x20000")
    a(f"s_mul_i32 s95, s2, {waves_per_wg}")
    a(f"s_add_u32 s95, s95, s{swave}")
    a("s_lshl_b32 s95, s95, 6")
    a("s_mov_b64 exec, 1")
    for i in range(n):
        a(f"v_mov_b32 v{vtmp}, s{70+2*i}")
        a(f"v_mov_b32 v{vtmp+1}, {4*i}")
        a(f"buffer_store_dword v{vtmp}, v{vtmp+1}, s[96:99], s95 offen")
        a("s_nop 1")
```

```python
from core import *

def sdivmod(a, q, r, src, c, tmp):
    M = (2**32 + c - 1) // c
    a(f"s_mul_hi_u32 s{q}, s{src}, {M}")
    a(f"s_mul_i32 s{tmp}, s{q}, {c}")
    a(f"s_sub_u32 s{r}, s{src}, s{tmp}")

N_MOD, N_LN = 108, 128
N_UNITS = dict(wqkv=648, wo=216, w1=1728, w2=1728)
K1_SWZ = ['wqkv', 'wo', 'w1', 'w2']

def emit_swizzle(a, which, su, first_free_s=40):
    end = a.label("swz_end")
    a("v_and_b32 v1, 63, v0")
    a("v_and_b32 v2, 15, v1")
    a("v_lshrrev_b32 v3, 4, v1")
    a("v_lshlrev_b32 v4, 4, v1")
    base = 0
    for m in which:
        n = N_UNITS[m]
        nxt = a.label("swz_next")
        a(f"s_cmp_ge_u32 s{su}, {base+n}")
        a(f"s_cbranch_scc1 {nxt}")
        a(f"s_sub_u32 s20, s{su}, {base}")
        load_ptr(a, 6, m)
        a("s_waitcnt lgkmcnt(0)")
        srd_in(a, 8, 6, m)
        srd_ws(a, 12, 4, m)
        a("s_mul_i32 s21, s20, 3072")
        if m == 'w1':
            sdivmod(a, 22, 23, 20, 18, 32)
            a("s_mul_i32 s33, s22, 96")
            a(f"s_mul_i32 s34, s23, {32*9216}")
            a("s_add_u32 s33, s33, s34")
            a("s_movk_i32 s35, 0")
            a(f"s_mov_b32 s36, {8*9216}")
            a("v_mul_lo_u32 v5, s36, v3")
            a("v_lshl_add_u32 v5, v2, 1, v5")
            a("v_add_u32 v5, s33, v5")
            offs = [i * 9216 for i in range(8)]
            joff = [('v5', 0), ('v5', 32), ('v5', 64)]
        elif m == 'w2':
            sdivmod(a, 22, 23, 20, 18, 32)
            sdivmod(a, 37, 38, 22, 12, 32)
            a(f"s_mul_i32 s33, s37, {576*1152}")
            a(f"s_mul_i32 s34, s23, {32*1152}")
            a("s_add_u32 s33, s33, s34")
            a("s_mul_i32 s34, s38, 96")
            a("s_add_u32 s33, s33, s34")
            a(f"s_mov_b32 s36, {4*1152}")
            a("v_mul_lo_u32 v5, s36, v3")
            a("v_lshl_add_u32 v5, v2, 1, v5")
            a("v_add_u32 v5, s33, v5")
            offs = [(16 * (i // 4) + i % 4) * 1152 for i in range(8)]
            joff = [('v5', 0), ('v5', 32), ('v5', 64)]
        elif m == 'wqkv':
            sdivmod(a, 22, 23, 20, 3, 32)
            sdivmod(a, 37, 38, 22, 18, 32)
            a("s_mul_i32 s33, s37, 288")
            a(f"s_mul_i32 s34, s38, {32*3456}")
            a("s_add_u32 s33, s33, s34")
            a(f"s_mov_b32 s36, {8*3456}")
            a("v_mul_lo_u32 v7, s36, v3")
            a("v_add_u32 v7, s33, v7")
            a("s_mul_i32 s34, s23, 108")
            a("v_lshl_add_u32 v5, v2, 1, v7")
            a("v_add_u32 v5, s34, v5")
            a("v_lshrrev_b32 v8, 1, v2")
            a("v_mul_u32_u24 v8, 36, v8")
            a("v_and_b32 v9, 1, v2")
            a("v_lshl_add_u32 v8, v9, 1, v8")
            a("v_add_u32 v8, 32, v8")
            a("v_add_u32 v8, v8, v7")
            a("v_add_u32 v6, 72, v5")
            a("s_cmp_eq_u32 s23, 2")
            a("s_cselect_b64 vcc, -1, 0")
            a("v_cndmask_b32 v6, v6, v8, vcc")
            offs = [i * 3456 for i in range(8)]
            joff = [('v5', 0), ('v5', 36), ('v6', 0)]
        elif m == 'wo':
            sdivmod(a, 22, 23, 20, 3, 32)
            sdivmod(a, 37, 38, 22, 18, 32)
            a("s_mul_i32 s33, s37, 288")
            a("s_mul_i32 s34, s23, 96")
            a("s_add_u32 s33, s33, s34")
            big = a.label("wo_big")
            join = a.label("wo_join")
            a("s_cmp_ge_u32 s38, 16")
            a(f"s_cbranch_scc1 {big}")
            a(f"s_mul_i32 s34, s38, {36*1152}")
            a("s_add_u32 s33, s33, s34")
            a("v_lshrrev_b32 v7, 1, v3")
            a("v_mul_u32_u24 v7, 18, v7")
            a("v_and_b32 v8, 1, v3")
            a("v_lshl_add_u32 v7, v8, 2, v7")
            a("v_mul_u32_u24 v7, 1152, v7")
            for i, dd in enumerate([0,1,2,3,8,9,10,11]):
                a(f"s_mov_b32 s{24+i}, {dd*1152}")
            a(f"s_branch {join}")
            a(f"{big}:")
            a("s_sub_u32 s34, s38, 16")
            a(f"s_mul_i32 s34, s34, {18*16*1152}")
            a("s_add_u32 s33, s33, s34")
            a(f"s_add_u32 s33, s33, {16*1152}")
            a(f"s_mov_b32 s36, {72*1152}")
            a("v_mul_lo_u32 v7, s36, v3")
            for i in range(8):
                a(f"s_mov_b32 s{24+i}, {(18*(i//2)+i%2)*1152}")
            a(f"{join}:")
            a("v_lshl_add_u32 v5, v2, 1, v7")
            a("v_add_u32 v5, s33, v5")
            offs = None
            joff = [('v5', 0), ('v5', 32), ('v5', 64)]
        if offs is not None:
            for i in range(8):
                a(f"s_mov_b32 s{24+i}, {offs[i]}")
        for j in range(3):
            vo, imm = joff[j]
            for i in range(8):
                a(f"buffer_load_ushort v{16+8*j+i}, {vo}, s[8:11], s{24+i} offen offset:{imm}")
        for j in range(3):
            a(f"s_waitcnt vmcnt({8*(2-j) + j})")
            for d in range(4):
                a(f"v_lshl_or_b32 v{40+4*j+d}, v{16+8*j+2*d+1}, 16, v{16+8*j+2*d}")
            a(f"buffer_store_dwordx4 v[{40+4*j}:{43+4*j}], v4, s[12:15], s21 offen offset:{1024*j}")
        a(f"s_branch {end}")
        a(f"{nxt}:")
        base += n
    a(f"{end}:")

def emit_k1(a, name="k1_kernel"):
    n_units = sum(N_UNITS[m] for m in K1_SWZ)
    n_swz_wg = (n_units + 3) // 4
    grid = N_MOD + N_LN + n_swz_wg
    kernel_begin(a, name)
    load_ptr(a, 4, 'ws')
    a("v_lshrrev_b32 v1, 6, v0")
    a("s_nop 0")
    a("v_readfirstlane_b32 s3, v1")
    L_ln, L_swz, L_end = a.label("ln"), a.label("swz"), a.label("end")
    a(f"s_cmp_ge_u32 s2, {grid}")
    a(f"s_cbranch_scc1 {L_end}")
    a(f"s_cmp_ge_u32 s2, {N_MOD+N_LN}")
    a(f"s_cbranch_scc1 {L_swz}")
    a(f"s_cmp_ge_u32 s2, {N_MOD}")
    a(f"s_cbranch_scc1 {L_ln}")
    load_ptr(a, 6, 'wmod')
    load_ptr(a, 16, 'c')
    a("s_waitcnt lgkmcnt(0)")
    srd_in(a, 8, 6, 'wmod')
    srd_in(a, 12, 16, 'c')
    srd_ws(a, 20, 4, 'modp')
    a("s_and_b32 s24, s2, 3")
    a("s_lshr_b32 s25, s2, 2")
    a("v_and_b32 v1, 63, v0")
    a("v_and_b32 v2, 15, v1")
    a("v_lshrrev_b32 v3, 4, v1")
    a("s_mul_i32 s26, s24, 144")
    a("s_mul_i32 s27, s3, 36")
    a("s_add_u32 s26, s26, s27")
    a("v_add_u32 v4, s26, v3")
    a("v_lshlrev_b32 v5, 1, v4")
    a("v_mul_u32_u24 v6, 6912, v4")
    a("v_lshl_add_u32 v6, v2, 4, v6")
    a("s_lshl_b32 s27, s25, 8")
    a("v_add_u32 v6, s27, v6")
    for it in range(9):
        a(f"buffer_load_ushort v{10+it}, v5, s[12:15], 0 offen offset:{it*8}")
    a("s_mov_b32 s28, 0")
    for it in range(9):
        a(f"buffer_load_dwordx4 v[{20+4*it}:{23+4*it}], v6, s[8:11], s28 offen")
        a(f"s_add_u32 s28, s28, {4*6912}")
    a("s_waitcnt vmcnt(9)")
    a("s_mov_b32 s29, 0xbfb8aa3b")
    for it in range(9):
        r = 10 + it
        a(f"v_lshlrev_b32 v{r}, 16, v{r}")
        a(f"v_mul_f32 v60, s29, v{r}")
        a(f"v_exp_f32 v60, v60")
        a("s_nop 0")
        a(f"v_add_f32 v60, 1.0, v60")
        a(f"v_rcp_f32 v60, v60")
        a("s_nop 0")
        a(f"v_mul_f32 v{r}, v{r}, v60")
        a(f"v_cvt_pk_bf16_f32 v{r}, v{r}, v{r}")
        a(f"v_and_b32 v{r}, 0xffff0000, v{r}")
    for i in range(8):
        a(f"v_mov_b32 v{64+i}, 0")
    for it in range(9):
        a(f"s_waitcnt vmcnt({8-it})")
        for d in range(4):
            r = 20 + 4 * it + d
            a(f"v_lshlrev_b32 v60, 16, v{r}")
            a(f"v_and_b32 v61, 0xffff0000, v{r}")
            a(f"v_fmac_f32 v{64+2*d}, v{10+it}, v60")
            a(f"v_fmac_f32 v{65+2*d}, v{10+it}, v61")
    a("s_lshl_b32 s27, s3, 2")
    a("v_add_u32 v7, s27, v3")
    a("v_lshlrev_b32 v7, 9, v7")
    a("v_lshl_add_u32 v7, v2, 5, v7")
    a("ds_write_b128 v7, v[64:67]")
    a("ds_write_b128 v7, v[68:71] offset:16")
    a("s_waitcnt lgkmcnt(0)")
    a("s_barrier")
    a("s_cmp_ge_u32 s3, 2")
    a(f"s_cbranch_scc1 {L_end}")
    a("v_lshlrev_b32 v8, 2, v0")
    for p in range(16):
        a(f"ds_read_b32 v{20+p}, v8 offset:{p*512}")
    a("s_waitcnt lgkmcnt(0)")
    for p in range(1, 16):
        a(f"v_add_f32 v20, v20, v{20+p}")
    a(f"s_mul_i32 s27, s24, {3456*4}")
    a("s_lshl_b32 s28, s25, 9")
    a("s_add_u32 s27, s27, s28")
    a("buffer_store_dword v20, v8, s[20:23], s27 offen")
    a(f"s_branch {L_end}")
    a(f"{L_ln}:")
    load_ptr(a, 6, 'x')
    a("s_waitcnt lgkmcnt(0)")
    srd_in(a, 8, 6, 'x')
    srd_ws(a, 12, 4, 'xh')
    a(f"s_sub_u32 s24, s2, {N_MOD}")
    a("v_and_b32 v1, 63, v0")
    a("v_and_b32 v2, 15, v1")
    a("v_lshrrev_b32 v3, 4, v1")
    a("s_lshl_b32 s25, s24, 4")
    a("v_add_u32 v4, s25, v2")
    a("v_mul_u32_u24 v4, 1152, v4")
    a("v_lshl_add_u32 v4, v3, 4, v4")
    a("s_lshl_b32 s25, s3, 6")
    a("v_add_u32 v4, s25, v4")
    a("s_lshl_b32 s25, s3, 2")
    a("v_lshlrev_b32 v5, 4, v2")
    a("v_add3_u32 v5, v5, s25, v3")
    a("v_lshlrev_b32 v5, 2, v5")
    a("v_lshlrev_b32 v6, 6, v2")
    a("s_mul_i32 s26, s24, 18")
    a("s_add_u32 s26, s26, s3")
    a("s_lshl_b32 s26, s26, 10")
    a("v_lshlrev_b32 v7, 4, v1")
    L5 = a.label("ln5")
    a("s_cmp_lt_u32 s3, 2")
    a(f"s_cbranch_scc1 {L5}")
    def ln_path(ns):
        for i in range(ns):
            a(f"buffer_load_dwordx4 v[{16+4*i}:{19+4*i}], v4, s[8:11], 0 offen offset:{256*i}")
        X = 40
        for i in range(ns):
            a(f"s_waitcnt vmcnt({ns-1-i})")
            for d in range(4):
                r = 16 + 4 * i + d
                a(f"v_lshlrev_b32 v{X+8*i+2*d}, 16, v{r}")
                a(f"v_and_b32 v{X+8*i+2*d+1}, 0xffff0000, v{r}")
        n = 8 * ns
        a(f"v_add_f32 v8, v{X}, v{X+1}")
        for e in range(2, n):
            a(f"v_add_f32 v8, v8, v{X+e}")
        def allred(ldsbase):
            a(f"ds_write_b32 v5, v8 offset:{ldsbase}")
            a("s_waitcnt lgkmcnt(0)")
            a("s_barrier")
            for q in range(4):
                a(f"ds_read_b128 v[{84+4*q}:{87+4*q}], v6 offset:{ldsbase+16*q}")
            a("s_waitcnt lgkmcnt(0)")
            a("v_add_f32 v8, v84, v85")
            for e in range(2, 16):
                a(f"v_add_f32 v8, v8, v{84+e}")
        allred(0)
        a(f"s_mov_b32 s27, {float_hex(1.0/576)}")
        a("v_mul_f32 v9, s27, v8")
        for e in range(n):
            a(f"v_sub_f32 v{X+e}, v{X+e}, v9")
        a(f"v_mul_f32 v8, v{X}, v{X}")
        for e in range(1, n):
            a(f"v_fmac_f32 v8, v{X+e}, v{X+e}")
        allred(1024)
        a("v_mov_b32 v10, 0x3727c5ac")
        a("v_fmac_f32 v10, s27, v8")
        a("v_rsq_f32 v10, v10")
        a("s_nop 0")
        for e in range(n):
            a(f"v_mul_f32 v{X+e}, v{X+e}, v10")
        for i in range(ns):
            for d in range(4):
                a(f"v_cvt_pk_bf16_f32 v{16+4*i+d}, v{X+8*i+2*d}, v{X+8*i+2*d+1}")
            a(f"s_add_u32 s28, s26, {i*4096}")
            a(f"buffer_store_dwordx4 v[{16+4*i}:{19+4*i}], v7, s[12:15], s28 offen")
        a(f"s_branch {L_end}")
    ln_path(4)
    a(f"{L5}:")
    ln_path(5)
    a(f"{L_swz}:")
    a(f"s_sub_u32 s18, s2, {N_MOD+N_LN}")
    a("s_lshl_b32 s18, s18, 2")
    a("s_add_u32 s18, s18, s3")
    a("s_waitcnt lgkmcnt(0)")
    emit_swizzle(a, K1_SWZ, 18)
    a(f"{L_end}:")
    kernel_end(a, name, 104)
    return dict(name=name, grid=grid, block=256, lds=8192)

import struct
def float_hex(f):
    return "0x%08x" % struct.unpack("<I", struct.pack("<f", f))[0]
```

```python
import sys, importlib
sys.path.insert(0, 'gen')
from core import *
import k1
HEADER = open('adaLN_cond__mha_block__dense_activation_silu__prompt.s.ref').read().split("; Override launch geometry")[0]
def build(kernels=None):
    a = Asm()
    infos = []
    mods = [('k1', 'emit_k1')]
    for mname, fn in (('k1','emit_k1'),('k2','emit_k2'),('k3','emit_k3'),('k4','emit_k4'),('k5','emit_k5'),('k6','emit_k6')):
        try:
            m = importlib.import_module(mname)
        except ModuleNotFoundError:
            continue
        infos.append(getattr(m, fn)(a))
    hdr = HEADER
    for i in infos:
        hdr += f"; @launch kernel={i['name']} grid=({i['grid']},1,1) block=({i['block']},1,1) lds={i['lds']}\n"
    txt = hdr + '.amdgcn_target "amdgcn-amd-amdhsa--gfx950"\n' + a.text()
    return txt, infos
if __name__ == '__main__':
    txt, infos = build()
    out = sys.argv[1] if len(sys.argv) > 1 else 'full.s'
    open(out, 'w').write(txt)
    print(infos, len(txt))
```

```python
class Asm:
    def __init__(self):
        self.lines = []
        self.uid = 0
    def __call__(self, s=""):
        for ln in s.split("\n"):
            ln = ln.strip()
            if ln == "":
                continue
            if ln.endswith(":") or ln.startswith("."):
                self.lines.append(ln)
            else:
                self.lines.append("    " + ln)
    def label(self, base):
        self.uid += 1
        return f"L_{base}_{self.uid}"
    def text(self):
        return "\n".join(self.lines) + "\n"

def vr(a, n=1):
    return f"v{a}" if n == 1 else f"v[{a}:{a+n-1}]"
def ar(a, n=1):
    return f"a{a}" if n == 1 else f"a[{a}:{a+n-1}]"
def sr(a, n=1):
    return f"s{a}" if n == 1 else f"s[{a}:{a+n-1}]"
def ur(a, n=1):
    if a < 256:
        assert a + n <= 256
        return vr(a, n)
    return ar(a - 256, n)

KA = dict(x=0, wqkv=8, wo=16, bx=24, w1=32, w2=40, c=48, wmod=56, out=64, dbg=72, ws=80)

T, D, F, H, DH = 2048, 576, 4608, 32, 18
VROWS = 19
VH = VROWS * 16
VU = 2 * VH
TILE = 1152 + 2 * VU
HEADB = 64 * TILE
def _layout():
    off = 0
    L = {}
    def add(name, size):
        nonlocal off
        L[name] = (off, size)
        off += (size + 4095) // 4096 * 4096
    add('modp', 4 * 3456 * 4)
    add('xh', T * D * 2)
    add('wqkv', 12 * 162 * 1024)
    add('wo', 4 * 162 * 1024)
    add('w1', 8 * 12 * 54 * 1024)
    add('w2', 8 * 12 * 54 * 1024)
    add('q1', 32 * 64 * 1024)
    add('q2', 32 * 2048 * 4)
    add('kv', 32 * 64 * 2368)
    add('of', T * D * 2)
    add('x2', T * D * 2)
    add('st', 12 * T * 8)
    add('modr', 3456 * 4)
    add('part', 8 * T * D * 2)
    return L
WS = _layout()
SIZES = dict(x=T*D*2, wqkv=D*3*D*2, wo=D*D*2, w1=D*F*2, w2=F*D*2, c=D*2, wmod=D*6*D*2, out=T*D*2)

def kernel_begin(a, name):
    a(f".text\n.globl {name}\n.p2align 8\n.type {name},@function\n{name}:")
def kernel_end(a, name, vgprs, sgprs=102):
    if vgprs <= 256:
        acc = (vgprs + 3) // 4 * 4
        nfv = vgprs
    else:
        acc = 256
        nfv = vgprs
    a(f"""s_endpgm
.section .rodata,"a"
.p2align 6
.amdhsa_kernel {name}
.amdhsa_next_free_vgpr {nfv}
.amdhsa_next_free_sgpr {sgprs}
.amdhsa_accum_offset {acc}
.amdhsa_group_segment_fixed_size 0
.amdhsa_kernarg_size 88
.amdhsa_user_sgpr_count 2
.amdhsa_user_sgpr_kernarg_segment_ptr 1
.amdhsa_system_sgpr_workgroup_id_x 1
.end_amdhsa_kernel""")

def load_ptr(a, sdst, name):
    a(f"s_load_dwordx2 {sr(sdst,2)}, s[0:1], {KA[name]}")
def srd_in(a, q, p, name):
    a(f"s_mov_b32 s{q}, s{p}")
    a(f"s_and_b32 s{q+1}, s{p+1}, 0xffff")
    a(f"s_mov_b32 s{q+2}, {SIZES[name]}")
    a(f"s_mov_b32 s{q+3}, 0x20000")
def srd_ws(a, q, p, name):
    off, size = WS[name]
    a(f"s_add_u32 s{q}, s{p}, {off}")
    a(f"s_addc_u32 s{q+1}, s{p+1}, 0")
    a(f"s_and_b32 s{q+1}, s{q+1}, 0xffff")
    a(f"s_mov_b32 s{q+2}, {size}")
    a(f"s_mov_b32 s{q+3}, 0x20000")

import os
STAMPS = os.environ.get('STAMPS', '')
STAMP_OFF = 128 << 20
def stamp(a, kname, i):
    if STAMPS == kname:
        a(f"{'s_memrealtime' if os.environ.get('REALTIME') else 's_memtime'} s[{70+2*i}:{71+2*i}]")
def stamp_flush(a, kname, n, swave, waves_per_wg, ws_pair=4, vtmp=250):
    if STAMPS != kname:
        return
    a("s_waitcnt lgkmcnt(0)")
    a(f"s_add_u32 s96, s{ws_pair}, {STAMP_OFF}")
    a(f"s_addc_u32 s97, s{ws_pair+1}, 0")
    a("s_and_b32 s97, s97, 0xffff")
    a(f"s_mov_b32 s98, {1<<22}")
    a("s_mov_b32 s99, 0x20000")
    a(f"s_mul_i32 s95, s2, {waves_per_wg}")
    a(f"s_add_u32 s95, s95, s{swave}")
    a("s_lshl_b32 s95, s95, 6")
    a("s_mov_b64 exec, 1")
    for i in range(n):
        a(f"v_mov_b32 v{vtmp}, s{70+2*i}")
        a(f"v_mov_b32 v{vtmp+1}, {4*i}")
        a(f"buffer_store_dword v{vtmp}, v{vtmp+1}, s[96:99], s95 offen")
        a("s_nop 1")
```

```python
from core import *

def sdivmod(a, q, r, src, c, tmp):
    M = (2**32 + c - 1) // c
    a(f"s_mul_hi_u32 s{q}, s{src}, {M}")
    a(f"s_mul_i32 s{tmp}, s{q}, {c}")
    a(f"s_sub_u32 s{r}, s{src}, s{tmp}")

N_MOD, N_LN = 108, 128
N_UNITS = dict(wqkv=648, wo=216, w1=1728, w2=1728)
K1_SWZ = ['wqkv']
K1_SWT = []

def emit_swizzle(a, which, su, first_free_s=40):
    end = a.label("swz_end")
    a("v_and_b32 v1, 63, v0")
    a("v_and_b32 v2, 15, v1")
    a("v_lshrrev_b32 v3, 4, v1")
    a("v_lshlrev_b32 v4, 4, v1")
    base = 0
    for m in which:
        n = N_UNITS[m]
        nxt = a.label("swz_next")
        a(f"s_cmp_ge_u32 s{su}, {base+n}")
        a(f"s_cbranch_scc1 {nxt}")
        a(f"s_sub_u32 s20, s{su}, {base}")
        load_ptr(a, 6, m)
        a("s_waitcnt lgkmcnt(0)")
        srd_in(a, 8, 6, m)
        srd_ws(a, 12, 4, m)
        a("s_mul_i32 s21, s20, 3072")
        if m == 'w1':
            sdivmod(a, 22, 23, 20, 18, 32)
            a("s_mul_i32 s33, s22, 96")
            a(f"s_mul_i32 s34, s23, {32*9216}")
            a("s_add_u32 s33, s33, s34")
            a("s_movk_i32 s35, 0")
            a(f"s_mov_b32 s36, {8*9216}")
            a("v_mul_lo_u32 v5, s36, v3")
            a("v_lshl_add_u32 v5, v2, 1, v5")
            a("v_add_u32 v5, s33, v5")
            offs = [i * 9216 for i in range(8)]
            joff = [('v5', 0), ('v5', 32), ('v5', 64)]
        elif m == 'w2':
            sdivmod(a, 22, 23, 20, 18, 32)
            sdivmod(a, 37, 38, 22, 12, 32)
            a(f"s_mul_i32 s33, s37, {576*1152}")
            a(f"s_mul_i32 s34, s23, {32*1152}")
            a("s_add_u32 s33, s33, s34")
            a("s_mul_i32 s34, s38, 96")
            a("s_add_u32 s33, s33, s34")
            a(f"s_mov_b32 s36, {4*1152}")
            a("v_mul_lo_u32 v5, s36, v3")
            a("v_lshl_add_u32 v5, v2, 1, v5")
            a("v_add_u32 v5, s33, v5")
            offs = [(16 * (i // 4) + i % 4) * 1152 for i in range(8)]
            joff = [('v5', 0), ('v5', 32), ('v5', 64)]
        elif m == 'wqkv':
            sdivmod(a, 22, 23, 20, 3, 32)
            sdivmod(a, 37, 38, 22, 18, 32)
            a("s_mul_i32 s33, s37, 288")
            a(f"s_mul_i32 s34, s38, {32*3456}")
            a("s_add_u32 s33, s33, s34")
            a(f"s_mov_b32 s36, {8*3456}")
            a("v_mul_lo_u32 v7, s36, v3")
            a("v_add_u32 v7, s33, v7")
            a("s_mul_i32 s34, s23, 108")
            a("v_lshl_add_u32 v5, v2, 1, v7")
            a("v_add_u32 v5, s34, v5")
            a("v_lshrrev_b32 v8, 1, v2")
            a("v_mul_u32_u24 v8, 36, v8")
            a("v_and_b32 v9, 1, v2")
            a("v_lshl_add_u32 v8, v9, 1, v8")
            a("v_add_u32 v8, 32, v8")
            a("v_add_u32 v8, v8, v7")
            a("v_add_u32 v6, 72, v5")
            a("s_cmp_eq_u32 s23, 2")
            a("s_cselect_b64 vcc, -1, 0")
            a("v_cndmask_b32 v6, v6, v8, vcc")
            offs = [i * 3456 for i in range(8)]
            joff = [('v5', 0), ('v5', 36), ('v6', 0)]
        elif m == 'wo':
            sdivmod(a, 22, 23, 20, 3, 32)
            sdivmod(a, 37, 38, 22, 18, 32)
            a("s_mul_i32 s33, s37, 288")
            a("s_mul_i32 s34, s23, 96")
            a("s_add_u32 s33, s33, s34")
            big = a.label("wo_big")
            join = a.label("wo_join")
            a("s_cmp_ge_u32 s38, 16")
            a(f"s_cbranch_scc1 {big}")
            a(f"s_mul_i32 s34, s38, {36*1152}")
            a("s_add_u32 s33, s33, s34")
            a("v_lshrrev_b32 v7, 1, v3")
            a("v_mul_u32_u24 v7, 18, v7")
            a("v_and_b32 v8, 1, v3")
            a("v_lshl_add_u32 v7, v8, 2, v7")
            a("v_mul_u32_u24 v7, 1152, v7")
            for i, dd in enumerate([0,1,2,3,8,9,10,11]):
                a(f"s_mov_b32 s{24+i}, {dd*1152}")
            a(f"s_branch {join}")
            a(f"{big}:")
            a("s_sub_u32 s34, s38, 16")
            a(f"s_mul_i32 s34, s34, {18*16*1152}")
            a("s_add_u32 s33, s33, s34")
            a(f"s_add_u32 s33, s33, {16*1152}")
            a(f"s_mov_b32 s36, {72*1152}")
            a("v_mul_lo_u32 v7, s36, v3")
            for i in range(8):
                a(f"s_mov_b32 s{24+i}, {(18*(i//2)+i%2)*1152}")
            a(f"{join}:")
            a("v_lshl_add_u32 v5, v2, 1, v7")
            a("v_add_u32 v5, s33, v5")
            offs = None
            joff = [('v5', 0), ('v5', 32), ('v5', 64)]
        if offs is not None:
            for i in range(8):
                a(f"s_mov_b32 s{24+i}, {offs[i]}")
        for j in range(3):
            vo, imm = joff[j]
            for i in range(8):
                a(f"buffer_load_ushort v{16+8*j+i}, {vo}, s[8:11], s{24+i} offen offset:{imm}")
        for j in range(3):
            a(f"s_waitcnt vmcnt({8*(2-j) + j})")
            for d in range(4):
                a(f"v_lshl_or_b32 v{40+4*j+d}, v{16+8*j+2*d+1}, 16, v{16+8*j+2*d}")
            a(f"buffer_store_dwordx4 v[{40+4*j}:{43+4*j}], v4, s[12:15], s21 offen offset:{1024*j}")
        a(f"s_branch {end}")
        a(f"{nxt}:")
        base += n
    a(f"{end}:")


def swz_tr_setup(a, V):
    a(f"v_and_b32 v{V+7}, 63, v0")
    for d in range(3):
        a(f"v_add_u32 v{V+8}, {64*d}, v{V+7}")
        a(f"v_mul_u32_u24 v{V+9}, 10923, v{V+8}")
        a(f"v_lshrrev_b32 v{V+d}, 16, v{V+9}")
        a(f"v_mul_u32_u24 v{V+9}, 6, v{V+d}")
        a(f"v_sub_u32 v{V+9}, v{V+8}, v{V+9}")
        a(f"v_lshlrev_b32 v{V+3+d}, 4, v{V+9}")
    a(f"v_lshrrev_b32 v{V+8}, 4, v{V+7}")
    a(f"v_lshlrev_b32 v{V+8}, 3, v{V+8}")
    a(f"v_bfe_u32 v{V+9}, v{V+7}, 2, 2")
    a(f"v_add_u32 v{V+8}, v{V+8}, v{V+9}")
    a(f"v_mul_u32_u24 v{V+8}, 96, v{V+8}")
    a(f"v_and_b32 v{V+9}, 3, v{V+7}")
    a(f"v_lshl_add_u32 v{V+6}, v{V+9}, 3, v{V+8}")
    a(f"v_lshlrev_b32 v{V+7}, 4, v{V+7}")

def swz_tr_rowperm(a, kind, V, VO):
    for d in range(3):
        r = V + d
        t0, t1, t2 = V + 8, V + 9, V + 10
        if kind == 'w1':
            a(f"v_mul_u32_u24 v{VO+d}, 9216, v{r}")
        else:
            a(f"v_lshrrev_b32 v{t0}, 3, v{r}")
            a(f"v_and_b32 v{t1}, 7, v{r}")
            if kind == 'w2':
                a(f"v_lshrrev_b32 v{t2}, 2, v{t1}")
                a(f"v_lshlrev_b32 v{t2}, 4, v{t2}")
                a(f"v_lshl_add_u32 v{t2}, v{t0}, 2, v{t2}")
                a(f"v_and_b32 v{t1}, 3, v{t1}")
                a(f"v_add_u32 v{t2}, v{t2}, v{t1}")
            elif kind == 'wo_a':
                a(f"v_lshrrev_b32 v{t2}, 1, v{t0}")
                a(f"v_mul_u32_u24 v{t2}, 18, v{t2}")
                a(f"v_and_b32 v{t0}, 1, v{t0}")
                a(f"v_lshl_add_u32 v{t2}, v{t0}, 2, v{t2}")
                a(f"v_lshrrev_b32 v{t0}, 2, v{t1}")
                a(f"v_lshl_add_u32 v{t2}, v{t0}, 3, v{t2}")
                a(f"v_and_b32 v{t1}, 3, v{t1}")
                a(f"v_add_u32 v{t2}, v{t2}, v{t1}")
            elif kind == 'wo_b':
                a(f"v_mul_u32_u24 v{t2}, 72, v{t0}")
                a(f"v_lshrrev_b32 v{t0}, 1, v{t1}")
                a(f"v_mul_u32_u24 v{t0}, 18, v{t0}")
                a(f"v_add_u32 v{t2}, v{t2}, v{t0}")
                a(f"v_and_b32 v{t1}, 1, v{t1}")
                a(f"v_add_u32 v{t2}, v{t2}, v{t1}")
            a(f"v_mul_u32_u24 v{VO+d}, 1152, v{t2}")
        a(f"v_add_u32 v{VO+d}, v{VO+d}, v{V+3+d}")

def swz_unit_base(a, m, su, sb, sd, t0):
    a(f"s_mul_i32 s{sd}, s{su}, 3072")
    if m == 'w1':
        sdivmod(a, t0, t0+1, su, 18, t0+2)
        a(f"s_mul_i32 s{sb}, s{t0}, 96")
        a(f"s_mul_i32 s{t0+2}, s{t0+1}, {32*9216}")
        a(f"s_add_u32 s{sb}, s{sb}, s{t0+2}")
    elif m == 'w2':
        sdivmod(a, t0, t0+1, su, 18, t0+2)
        sdivmod(a, t0+3, t0+4, t0, 12, t0+2)
        a(f"s_mul_i32 s{sb}, s{t0+3}, {576*1152}")
        a(f"s_mul_i32 s{t0+2}, s{t0+1}, {32*1152}")
        a(f"s_add_u32 s{sb}, s{sb}, s{t0+2}")
        a(f"s_mul_i32 s{t0+2}, s{t0+4}, 96")
        a(f"s_add_u32 s{sb}, s{sb}, s{t0+2}")
    elif m == 'wo':
        sdivmod(a, t0, t0+1, su, 3, t0+2)
        sdivmod(a, t0+3, t0+4, t0, 18, t0+2)
        a(f"s_mul_i32 s{sb}, s{t0+3}, 288")
        a(f"s_mul_i32 s{t0+2}, s{t0+1}, 96")
        a(f"s_add_u32 s{sb}, s{sb}, s{t0+2}")
        a(f"s_mul_i32 s{t0+2}, s{t0+4}, {36*1152}")
        a(f"s_sub_u32 s{t0}, s{t0+4}, 16")
        a(f"s_mul_i32 s{t0}, s{t0}, {18*16*1152}")
        a(f"s_add_u32 s{t0}, s{t0}, {16*1152}")
        a(f"s_cmp_ge_u32 s{t0+4}, 16")
        a(f"s_cselect_b32 s{t0+2}, s{t0}, s{t0+2}")
        a(f"s_cselect_b32 s{t0+5}, 1, 0")
        a(f"s_add_u32 s{sb}, s{sb}, s{t0+2}")

def emit_swizzle_tr(a, which, su, slds, end):
    V = 4
    swz_tr_setup(a, V)
    a(f"v_add_u32 v{V+6}, s{slds}, v{V+6}")
    base = 0
    for m in which:
        n = N_UNITS[m]
        nxt = a.label("swt_next")
        a(f"s_cmp_ge_u32 s{su}, {base+n}")
        a(f"s_cbranch_scc1 {nxt}")
        a(f"s_sub_u32 s20, s{su}, {base}")
        load_ptr(a, 6, m)
        swz_unit_base(a, m, 20, 21, 22, 32)
        VO = 16
        if m == 'wo':
            lb, lj = a.label("wob"), a.label("woj")
            a("s_cmp_eq_u32 s37, 1")
            a(f"s_cbranch_scc1 {lb}")
            swz_tr_rowperm(a, 'wo_a', V, VO)
            a(f"s_branch {lj}")
            a(f"{lb}:")
            swz_tr_rowperm(a, 'wo_b', V, VO)
            a(f"{lj}:")
        else:
            swz_tr_rowperm(a, m, V, VO)
        a("s_waitcnt lgkmcnt(0)")
        srd_in(a, 8, 6, m)
        srd_ws(a, 12, 4, m)
        for d in range(3):
            a(f"s_add_u32 m0, s{slds}, {d*1024}")
            a("s_nop 0")
            a(f"buffer_load_dwordx4 v{VO+d}, s[8:11], s21 offen lds")
        a("s_waitcnt vmcnt(0)")
        for j in range(3):
            a(f"ds_read_b64_tr_b16 v[{24+4*j}:{25+4*j}], v{V+6} offset:{32*j}")
            a(f"ds_read_b64_tr_b16 v[{26+4*j}:{27+4*j}], v{V+6} offset:{32*j+384}")
        for j in range(3):
            a(f"s_waitcnt lgkmcnt({4-2*j})")
            a(f"buffer_store_dwordx4 v[{24+4*j}:{27+4*j}], v{V+7}, s[12:15], s22 offen offset:{1024*j}")
        a(f"s_branch {end}")
        a(f"{nxt}:")
        base += n

def emit_k1(a, name="k1_kernel"):
    n_units = sum(N_UNITS[m] for m in K1_SWZ) + sum(N_UNITS[m] for m in K1_SWT)
    n_swz_wg = (n_units + 3) // 4
    grid = N_MOD + N_LN + n_swz_wg
    kernel_begin(a, name)
    load_ptr(a, 4, 'ws')
    stamp(a, 'k1', 0)
    a("v_lshrrev_b32 v1, 6, v0")
    a("s_nop 0")
    a("v_readfirstlane_b32 s3, v1")
    L_ln, L_swz, L_end = a.label("ln"), a.label("swz"), a.label("end")
    a(f"s_cmp_ge_u32 s2, {grid}")
    a(f"s_cbranch_scc1 {L_end}")
    a(f"s_cmp_ge_u32 s2, {N_MOD+N_LN}")
    a(f"s_cbranch_scc1 {L_swz}")
    a(f"s_cmp_ge_u32 s2, {N_MOD}")
    a(f"s_cbranch_scc1 {L_ln}")
    load_ptr(a, 6, 'wmod')
    load_ptr(a, 16, 'c')
    a("s_waitcnt lgkmcnt(0)")
    srd_in(a, 8, 6, 'wmod')
    srd_in(a, 12, 16, 'c')
    srd_ws(a, 20, 4, 'modp')
    a("s_and_b32 s24, s2, 3")
    a("s_lshr_b32 s25, s2, 2")
    a("v_and_b32 v1, 63, v0")
    a("v_and_b32 v2, 15, v1")
    a("v_lshrrev_b32 v3, 4, v1")
    a("s_mul_i32 s26, s24, 144")
    a("s_mul_i32 s27, s3, 36")
    a("s_add_u32 s26, s26, s27")
    a("v_add_u32 v4, s26, v3")
    a("v_lshlrev_b32 v5, 1, v4")
    a("v_mul_u32_u24 v6, 6912, v4")
    a("v_lshl_add_u32 v6, v2, 4, v6")
    a("s_lshl_b32 s27, s25, 8")
    a("v_add_u32 v6, s27, v6")
    for it in range(9):
        a(f"buffer_load_ushort v{10+it}, v5, s[12:15], 0 offen offset:{it*8}")
    a("s_mov_b32 s28, 0")
    for it in range(9):
        a(f"buffer_load_dwordx4 v[{20+4*it}:{23+4*it}], v6, s[8:11], s28 offen")
        a(f"s_add_u32 s28, s28, {4*6912}")
    a("s_waitcnt vmcnt(9)")
    a("s_mov_b32 s29, 0xbfb8aa3b")
    for it in range(9):
        r = 10 + it
        a(f"v_lshlrev_b32 v{r}, 16, v{r}")
        a(f"v_mul_f32 v60, s29, v{r}")
        a(f"v_exp_f32 v60, v60")
        a("s_nop 0")
        a(f"v_add_f32 v60, 1.0, v60")
        a(f"v_rcp_f32 v60, v60")
        a("s_nop 0")
        a(f"v_mul_f32 v{r}, v{r}, v60")
        a(f"v_cvt_pk_bf16_f32 v{r}, v{r}, v{r}")
        a(f"v_and_b32 v{r}, 0xffff0000, v{r}")
    for i in range(8):
        a(f"v_mov_b32 v{64+i}, 0")
    for it in range(9):
        a(f"s_waitcnt vmcnt({8-it})")
        for d in range(4):
            r = 20 + 4 * it + d
            a(f"v_lshlrev_b32 v60, 16, v{r}")
            a(f"v_and_b32 v61, 0xffff0000, v{r}")
            a(f"v_fmac_f32 v{64+2*d}, v{10+it}, v60")
            a(f"v_fmac_f32 v{65+2*d}, v{10+it}, v61")
    a("s_lshl_b32 s27, s3, 2")
    a("v_add_u32 v7, s27, v3")
    a("v_lshlrev_b32 v7, 9, v7")
    a("v_lshl_add_u32 v7, v2, 5, v7")
    a("ds_write_b128 v7, v[64:67]")
    a("ds_write_b128 v7, v[68:71] offset:16")
    a("s_waitcnt lgkmcnt(0)")
    a("s_barrier")
    a("s_cmp_ge_u32 s3, 2")
    a(f"s_cbranch_scc1 {L_end}")
    a("v_lshlrev_b32 v8, 2, v0")
    for p in range(16):
        a(f"ds_read_b32 v{20+p}, v8 offset:{p*512}")
    a("s_waitcnt lgkmcnt(0)")
    for p in range(1, 16):
        a(f"v_add_f32 v20, v20, v{20+p}")
    a(f"s_mul_i32 s27, s24, {3456*4}")
    a("s_lshl_b32 s28, s25, 9")
    a("s_add_u32 s27, s27, s28")
    a("buffer_store_dword v20, v8, s[20:23], s27 offen")
    a(f"s_branch {L_end}")
    a(f"{L_ln}:")
    load_ptr(a, 6, 'x')
    a("s_waitcnt lgkmcnt(0)")
    srd_in(a, 8, 6, 'x')
    srd_ws(a, 12, 4, 'xh')
    a(f"s_sub_u32 s24, s2, {N_MOD}")
    a("v_and_b32 v1, 63, v0")
    a("v_and_b32 v2, 15, v1")
    a("v_lshrrev_b32 v3, 4, v1")
    a("s_lshl_b32 s25, s24, 4")
    a("v_add_u32 v4, s25, v2")
    a("v_mul_u32_u24 v4, 1152, v4")
    a("v_lshl_add_u32 v4, v3, 4, v4")
    a("s_lshl_b32 s25, s3, 6")
    a("v_add_u32 v4, s25, v4")
    a("s_lshl_b32 s25, s3, 2")
    a("v_lshlrev_b32 v5, 4, v2")
    a("v_add3_u32 v5, v5, s25, v3")
    a("v_lshlrev_b32 v5, 2, v5")
    a("v_lshlrev_b32 v6, 6, v2")
    a("s_mul_i32 s26, s24, 18")
    a("s_add_u32 s26, s26, s3")
    a("s_lshl_b32 s26, s26, 10")
    a("v_lshlrev_b32 v7, 4, v1")
    L5 = a.label("ln5")
    a("s_cmp_lt_u32 s3, 2")
    a(f"s_cbranch_scc1 {L5}")
    def ln_path(ns):
        for i in range(ns):
            a(f"buffer_load_dwordx4 v[{16+4*i}:{19+4*i}], v4, s[8:11], 0 offen offset:{256*i}")
        X = 40
        for i in range(ns):
            a(f"s_waitcnt vmcnt({ns-1-i})")
            for d in range(4):
                r = 16 + 4 * i + d
                a(f"v_lshlrev_b32 v{X+8*i+2*d}, 16, v{r}")
                a(f"v_and_b32 v{X+8*i+2*d+1}, 0xffff0000, v{r}")
        n = 8 * ns
        a(f"v_add_f32 v8, v{X}, v{X+1}")
        for e in range(2, n):
            a(f"v_add_f32 v8, v8, v{X+e}")
        def allred(ldsbase):
            a(f"ds_write_b32 v5, v8 offset:{ldsbase}")
            a("s_waitcnt lgkmcnt(0)")
            a("s_barrier")
            for q in range(4):
                a(f"ds_read_b128 v[{84+4*q}:{87+4*q}], v6 offset:{ldsbase+16*q}")
            a("s_waitcnt lgkmcnt(0)")
            a("v_add_f32 v8, v84, v85")
            for e in range(2, 16):
                a(f"v_add_f32 v8, v8, v{84+e}")
        allred(0)
        a(f"s_mov_b32 s27, {float_hex(1.0/576)}")
        a("v_mul_f32 v9, s27, v8")
        for e in range(n):
            a(f"v_sub_f32 v{X+e}, v{X+e}, v9")
        a(f"v_mul_f32 v8, v{X}, v{X}")
        for e in range(1, n):
            a(f"v_fmac_f32 v8, v{X+e}, v{X+e}")
        allred(1024)
        a("v_mov_b32 v10, 0x3727c5ac")
        a("v_fmac_f32 v10, s27, v8")
        a("v_rsq_f32 v10, v10")
        a("s_nop 0")
        for e in range(n):
            a(f"v_mul_f32 v{X+e}, v{X+e}, v10")
        for i in range(ns):
            for d in range(4):
                a(f"v_cvt_pk_bf16_f32 v{16+4*i+d}, v{X+8*i+2*d}, v{X+8*i+2*d+1}")
            a(f"s_add_u32 s28, s26, {i*4096}")
            a(f"buffer_store_dwordx4 v[{16+4*i}:{19+4*i}], v7, s[12:15], s28 offen")
        a(f"s_branch {L_end}")
    ln_path(4)
    a(f"{L5}:")
    ln_path(5)
    a(f"{L_swz}:")
    a(f"s_sub_u32 s18, s2, {N_MOD+N_LN}")
    a("s_lshl_b32 s18, s18, 2")
    a("s_add_u32 s18, s18, s3")
    a("s_waitcnt lgkmcnt(0)")
    L_swt = a.label("swt")
    n_g = sum(N_UNITS[m] for m in K1_SWZ)
    a(f"s_cmp_ge_u32 s18, {n_g}")
    a(f"s_cbranch_scc1 {L_swt}")
    emit_swizzle(a, K1_SWZ, 18)
    a(f"s_branch {L_end}")
    a(f"{L_swt}:")
    a(f"s_sub_u32 s18, s18, {n_g}")
    a("s_mul_i32 s19, s3, 3072")
    emit_swizzle_tr(a, K1_SWT, 18, 19, L_end)
    a(f"{L_end}:")
    if STAMPS == 'k1':
        a("s_mov_b64 exec, -1")
        a("s_waitcnt vmcnt(0) lgkmcnt(0)")
        stamp(a, 'k1', 1)
        stamp_flush(a, 'k1', 2, 3, 4, vtmp=100)
    kernel_end(a, name, 104)
    return dict(name=name, grid=grid, block=256, lds=12288)

import struct
def float_hex(f):
    return "0x%08x" % struct.unpack("<I", struct.pack("<f", f))[0]
```

```python
import sys, numpy as np
sys.path.insert(0, '.')
from hipdrv import *
def kern(name, mode, depth, iters, nv=128):
    body = ""
    if mode == 'vgpr':
        body += "".join(f"    buffer_load_dwordx4 v[{16+4*i}:{19+4*i}], v1, s[8:11], s20 offen offset:{(i%4)*1024}\n" + ("    s_add_u32 s20, s20, 4096\n" if i%4==3 else "") for i in range(depth))
        pro = body
        loop = "".join(f"    s_waitcnt vmcnt({depth-1})\n    v_add_u32 v2, v2, v{16+4*i}\n    buffer_load_dwordx4 v[{16+4*i}:{19+4*i}], v1, s[8:11], s20 offen offset:{(i%4)*1024}\n" + ("    s_add_u32 s20, s20, 4096\n" if i%4==3 else "") for i in range(depth))
    else:
        def dma(i):
            return f"    s_add_u32 m0, s21, {i*1024}\n    s_nop 0\n    buffer_load_dwordx4 v1, s[8:11], s20 offen lds\n    s_add_u32 s20, s20, 1024\n"
        pro = "".join(dma(i) for i in range(depth))
        loop = "".join(f"    s_waitcnt vmcnt({depth-1})\n" + dma(i) for i in range(depth))
    return f"""
.text
.globl {name}
.p2align 8
.type {name},@function
{name}:
    s_load_dwordx2 s[4:5], s[0:1], 0
    s_load_dwordx2 s[8:9], s[0:1], 8
    s_waitcnt lgkmcnt(0)
    s_mov_b32 s6, 0x1000000
    s_mov_b32 s7, 0x00020000
    s_mov_b32 s10, 0x10000000
    s_mov_b32 s11, 0x00020000
    v_lshrrev_b32 v200, 6, v0
    s_nop 1
    v_readfirstlane_b32 s22, v200
    s_lshl_b32 s3, s2, 4
    v_add_u32 v100, s3, v200
    v_lshlrev_b32 v100, 3, v100
    v_and_b32 v1, 63, v0
    v_lshlrev_b32 v1, 4, v1
    v_mov_b32 v2, 0
    s_and_b32 s23, s2, 7
    s_mul_i32 s23, s23, {1<<21}          ; 2MB region per xcd
    s_mul_i32 s24, s22, {(iters+1)*depth*1024}
    s_add_u32 s20, s23, s24
    s_mul_i32 s21, s22, {depth*1024}
    s_barrier
    s_memtime s[12:13]
    s_memrealtime s[40:41]
    s_waitcnt lgkmcnt(0)
{pro}
    s_mov_b32 s30, {iters}
L_{name}:
{loop}
    s_sub_u32 s30, s30, 1
    s_cmp_lg_u32 s30, 0
    s_cbranch_scc1 L_{name}
    s_waitcnt vmcnt(0)
    s_memtime s[14:15]
    s_memrealtime s[42:43]
    s_waitcnt lgkmcnt(0)
    s_sub_u32 s14, s14, s12
    s_sub_u32 s42, s42, s40
    v_mov_b32 v102, s14
    v_add_u32 v103, v2, v2
    v_mov_b32 v103, s42
    v_and_b32 v101, 63, v0
    v_cmp_eq_u32 vcc, 0, v101
    s_and_saveexec_b64 s[16:17], vcc
    buffer_store_dwordx2 v[102:103], v100, s[4:7], 0 offen
    s_endpgm
.section .rodata,"a"
.p2align 6
.amdhsa_kernel {name}
  .amdhsa_next_free_vgpr {nv}
  .amdhsa_next_free_sgpr 102
  .amdhsa_accum_offset {nv}
  .amdhsa_group_segment_fixed_size 0
  .amdhsa_kernarg_size 88
  .amdhsa_user_sgpr_count 2
  .amdhsa_user_sgpr_kernarg_segment_ptr 1
  .amdhsa_system_sgpr_workgroup_id_x 1
.end_amdhsa_kernel
""".replace("v200", "v99")
cfgs = []
for mode in ('vgpr',):
    for nw in (4, 8, 12):
        for depth in (4, 8):
            tot = 1344 // (nw*depth)
            cfgs.append((f"k_{mode}_{nw}_{depth}", mode, nw, depth, tot-1))
src = '.amdgcn_target "amdgcn-amd-amdhsa--gfx950"\n' + "".join(kern(n, mode, depth, it) for n, mode, nw, depth, it in cfgs)
assemble(src, 'mb4b.co', [(c[0], 128) for c in cfgs])
if len(sys.argv) > 1 and sys.argv[1] == 'asm': sys.exit(0)
m = Module('mb4b.co')
out = Buf(1 << 20)
inp = Buf(1 << 28)
inp.memset(1)
flush = Buf(1 << 29)
for n, mode, nw, depth, it in cfgs:
    for cold in (0, 1):
        res = []
        for rep in range(3):
            out.memset(0)
            if cold:
                flush.memset(rep)
            sync()
            m.launch(n, (256,1,1), (nw*64,1,1), [out.ptr, inp.ptr]+[0]*9, lds=150*1024)
            sync()
            rr = out.download(np.uint32, 256*32).reshape(256,16,2)[:, :nw]
            res.append((rr[:,:,0].max(axis=1), rr[:,:,1].max(axis=1)))
        r, rt = res[-1]
        byts = (it+1)*depth*nw*1024
        print(n, 'cold' if cold else 'warm', "bytes", byts, "cycles med %d max %d  B/clk med %.1f  time %.2f us  GB/s/CU %.1f clock %.2f GHz" % (np.median(r), r.max(), byts/np.median(r), np.median(rt)/100, byts/np.median(rt)/10, np.median(r)/np.median(rt)/10))
```

```python
import sys, numpy as np
sys.path.insert(0, '.')
from hipdrv import *
DESC = """
.section .rodata,"a"
.p2align 6
.amdhsa_kernel {name}
  .amdhsa_next_free_vgpr 128
  .amdhsa_next_free_sgpr 102
  .amdhsa_accum_offset 128
  .amdhsa_group_segment_fixed_size 0
  .amdhsa_kernarg_size 88
  .amdhsa_user_sgpr_count 2
  .amdhsa_user_sgpr_kernarg_segment_ptr 1
  .amdhsa_system_sgpr_workgroup_id_x 1
.end_amdhsa_kernel
"""
def head(name):
    return f"""
.text
.globl {name}
.p2align 8
.type {name},@function
{name}:
    s_load_dwordx2 s[4:5], s[0:1], 0
    s_load_dwordx2 s[8:9], s[0:1], 8
    s_waitcnt lgkmcnt(0)
    s_mov_b32 s6, 0x1000000
    s_mov_b32 s7, 0x00020000
    s_mov_b32 s10, 0x10000000
    s_mov_b32 s11, 0x00020000
    v_lshrrev_b32 v99, 6, v0
    s_nop 1
    v_readfirstlane_b32 s22, v99
    s_lshl_b32 s3, s2, 4
    v_add_u32 v100, s3, v99
    v_lshlrev_b32 v100, 3, v100
    v_and_b32 v1, 63, v0
    v_lshlrev_b32 v1, 4, v1
    v_mov_b32 v2, 0
"""
def tail(name):
    return f"""
    s_waitcnt vmcnt(0)
    s_memtime s[14:15]
    s_getreg_b32 s40, hwreg(HW_REG_XCC_ID)
    s_waitcnt lgkmcnt(0)
    s_sub_u32 s14, s14, s12
    v_mov_b32 v102, s14
    v_mov_b32 v103, s40
    v_and_b32 v101, 63, v0
    v_cmp_eq_u32 vcc, 0, v101
    s_and_saveexec_b64 s[16:17], vcc
    buffer_store_dwordx2 v[102:103], v100, s[4:7], 0 offen
    s_endpgm
""" + DESC.format(name=name)
def writer(name):
    s = head(name) + f"""
    s_and_b32 s23, s2, 7
    s_mul_i32 s23, s23, {1<<21}
    s_lshr_b32 s24, s2, 3
    s_mul_i32 s24, s24, {40*1024}
    s_add_u32 s20, s23, s24
    s_mul_i32 s24, s22, {5*1024}
    s_add_u32 s20, s20, s24
    s_memtime s[12:13]
    s_waitcnt lgkmcnt(0)
    v_mov_b32 v16, 1
    v_mov_b32 v17, 1
    v_mov_b32 v18, 1
    v_mov_b32 v19, 1
""" + "".join(f"    buffer_store_dwordx4 v[16:19], v1, s[8:11], s20 offen\n    s_add_u32 s20, s20, 1024\n" for i in range(5)) + tail(name)
    return s
def reader(name, rot, KB=160, share=16, depth=8):
    per = KB // 8
    n = per
    body = ""
    for i in range(n):
        body += f"    s_add_u32 s25, s20, s26\n    buffer_load_dwordx4 v[{16+4*(i%depth)}:{19+4*(i%depth)}], v1, s[8:11], s25 offen\n"
        body += f"    s_add_u32 s26, s26, 8192\n    s_cmp_ge_u32 s26, {KB*1024}\n    s_cselect_b32 s27, {KB*1024}, 0\n    s_sub_u32 s26, s26, s27\n"
        if i >= depth - 1:
            body += f"    s_waitcnt vmcnt({depth-1})\n"
    return head(name) + f"""
    s_and_b32 s23, s2, 7
    s_mul_i32 s23, s23, {1<<21}          ; 2MB per xcd
    s_lshr_b32 s24, s2, 3                ; idx 0..31
    s_lshr_b32 s28, s24, {share.bit_length()-1}   ; group
    s_mul_i32 s28, s28, {KB*1024}
    s_add_u32 s20, s23, s28
    s_lshl_b32 s29, s22, 10
    s_add_u32 s20, s20, s29              ; + wave*1KB  (wave w reads pieces w, w+8, ...)
    s_and_b32 s24, s24, {share-1}
    s_mul_i32 s26, s24, {(per // share if rot else 0) * 8192 if per >= share else (8192 if rot else 0)}
    s_barrier
    s_memtime s[12:13]
    s_memrealtime s[40:41]
    s_waitcnt lgkmcnt(0)
{body}
    s_waitcnt vmcnt(0)
    s_memrealtime s[42:43]
    s_waitcnt lgkmcnt(0)
    s_sub_u32 s40, s42, s40
""" + tail(name).replace("s_getreg_b32 s40, hwreg(HW_REG_XCC_ID)", "")

src = '.amdgcn_target "amdgcn-amd-amdhsa--gfx950"\n' + writer('k_w') + reader('k_r0', False) + reader('k_r1', True) + reader('k_r0s4', False, 160, 4) + reader('k_r1s4', True, 160, 4)
assemble(src, 'mb11.co', [(n,128) for n in ('k_w','k_r0','k_r1','k_r0s4','k_r1s4')])
if len(sys.argv) > 1 and sys.argv[1] == 'asm': sys.exit(0)
m = Module('mb11.co')
out = Buf(1 << 20); out2 = Buf(1<<20)
inp = Buf(1 << 28)
inp.memset(1)
flush = Buf(1 << 29)
for rd in ('k_r0', 'k_r1', 'k_r0s4', 'k_r1s4', 'k_r0', 'k_r1'):
    for rep in range(2):
        flush.memset(rep); sync()
        flush.memset_async(rep)
        m.launch('k_w', (256,1,1), (512,1,1), [out2.ptr, inp.ptr]+[0]*9, lds=150*1024)
        m.launch(rd, (256,1,1), (512,1,1), [out.ptr, inp.ptr]+[0]*9, lds=150*1024)
        sync()
        r = out.download(np.uint32, 256*32).reshape(256,16,2)[:, :8]
        cyc = r[:,:,0].max(axis=1); rt = r[:,:,1].max(axis=1)
        print(rd, "cycles med %d  B/clk %.1f  time %.2f us GB/s %.1f" % (np.median(cyc), 160*1024/np.median(cyc), np.median(rt)/100, 160*1024/np.median(rt)/10))
```

```python
import sys, numpy as np
sys.path.insert(0, '.')
from hipdrv import *
DESC = """
.section .rodata,"a"
.p2align 6
.amdhsa_kernel {name}
  .amdhsa_next_free_vgpr 128
  .amdhsa_next_free_sgpr 102
  .amdhsa_accum_offset 128
  .amdhsa_group_segment_fixed_size 0
  .amdhsa_kernarg_size 88
  .amdhsa_user_sgpr_count 2
  .amdhsa_user_sgpr_kernarg_segment_ptr 1
  .amdhsa_system_sgpr_workgroup_id_x 1
.end_amdhsa_kernel
"""
def head(name):
    return f"""
.text
.globl {name}
.p2align 8
.type {name},@function
{name}:
    s_load_dwordx2 s[4:5], s[0:1], 0
    s_load_dwordx2 s[8:9], s[0:1], 8
    s_waitcnt lgkmcnt(0)
    s_mov_b32 s6, 0x1000000
    s_mov_b32 s7, 0x00020000
    s_mov_b32 s10, 0x10000000
    s_mov_b32 s11, 0x00020000
    v_lshrrev_b32 v99, 6, v0
    s_nop 1
    v_readfirstlane_b32 s22, v99
    s_lshl_b32 s3, s2, 4
    v_add_u32 v100, s3, v99
    v_lshlrev_b32 v100, 3, v100
    v_and_b32 v1, 63, v0
    v_lshlrev_b32 v1, 4, v1
"""
SL = 12 * 108 * 1024
def slice_of(nsl):
    if nsl == 1:
        return "    s_and_b32 s23, s2, 7\n"
    return "    s_and_b32 s23, s2, 1\n    s_lshl_b32 s23, s23, 2\n    s_bfe_u32 s24, s2, 0x20003\n    s_add_u32 s23, s23, s24\n"
def writer(name, nsl, readback):
    s = head(name) + f"""
    s_and_b32 s23, s2, 7
    s_mul_i32 s23, s23, {SL}
    s_lshr_b32 s24, s2, 3
    s_mul_i32 s24, s24, {SL//32}
    s_add_u32 s20, s23, s24
    s_mul_i32 s24, s22, {SL//32//12}
    s_add_u32 s20, s20, s24
    v_mov_b32 v16, 1
    v_mov_b32 v17, 1
    v_mov_b32 v18, 1
    v_mov_b32 v19, 1
""" + "".join(f"    buffer_store_dwordx4 v[16:19], v1, s[8:11], s20 offen offset:{i*1024} sc1\n" for i in range(4))
    if readback:
        s += "    s_waitcnt vmcnt(0)\n" + "".join(f"    buffer_load_dwordx4 v[{20+4*i}:{23+4*i}], v1, s[8:11], s20 offen offset:{i*1024}\n" for i in range(4)) + "    s_waitcnt vmcnt(0)\n"
    return s + "    s_endpgm\n" + DESC.format(name=name)
def reader(name, nsl, PD):
    body = ""
    for st in range(36 + PD):
        if st < 36:
            for j in range(3):
                r = 16 + 12 * (st % (PD + 1)) + 4 * j
                body += f"    buffer_load_dwordx4 v[{r}:{r+3}], v1, s[8:11], s20 offen offset:{j*1024}\n"
            body += "    s_add_u32 s20, s20, 3072\n"
        if st >= PD:
            body += f"    s_waitcnt vmcnt({3*min(PD, 35-(st-PD))})\n"
    return head(name) + slice_of(nsl) + f"""
    s_mul_i32 s23, s23, {SL}
    s_mul_i32 s24, s22, {108*1024}
    s_add_u32 s20, s23, s24
    s_barrier
    s_memtime s[12:13]
    s_memrealtime s[40:41]
    s_waitcnt lgkmcnt(0)
{body}
    s_memtime s[14:15]
    s_memrealtime s[42:43]
    s_waitcnt lgkmcnt(0)
    s_sub_u32 s14, s14, s12
    s_sub_u32 s40, s42, s40
    v_mov_b32 v102, s14
    v_mov_b32 v103, s40
    v_and_b32 v101, 63, v0
    v_cmp_eq_u32 vcc, 0, v101
    s_and_saveexec_b64 s[16:17], vcc
    buffer_store_dwordx2 v[102:103], v100, s[4:7], 0 offen
    s_endpgm
""" + DESC.format(name=name)
K = {'w': writer('w', 1, False), 'wr': writer('wr', 1, True), 'r1': reader('r1', 1, 3), 'r4': reader('r4', 4, 3), 'r1d': reader('r1d', 1, 6), 'r4d': reader('r4d', 4, 6)}
src = '.amdgcn_target "amdgcn-amd-amdhsa--gfx950"\n' + "".join(K.values())
assemble(src, 'mb12.co', [(n,128) for n in K])
if len(sys.argv) > 1 and sys.argv[1] == 'asm': sys.exit(0)
m = Module('mb12.co')
out = Buf(1 << 20); out2 = Buf(1<<20); inp = Buf(1 << 28); inp.memset(1); flush = Buf(1 << 29)
for w, rd in (('w','r1'), ('w','r4'), ('wr','r1'), ('wr','r4'), ('w','r1d'), ('w','r4d'), ('wr','r1d')):
    for rep in range(2):
        flush.memset(rep); sync()
        flush.memset_async(rep)
        m.launch(w, (256,1,1), (768,1,1), [out2.ptr, inp.ptr]+[0]*9, lds=150*1024)
        m.launch(rd, (256,1,1), (768,1,1), [out.ptr, inp.ptr]+[0]*9, lds=150*1024)
        sync()
        r = out.download(np.uint32, 256*32).reshape(256,16,2)[:, :12]
        cyc = r[:,:,0].max(axis=1); rt = r[:,:,1].max(axis=1)
    print(w, rd, "cycles med %d  B/clk %.1f  time %.2f us GB/s %.1f" % (np.median(cyc), SL/np.median(cyc), np.median(rt)/100, SL/np.median(rt)/10))
```

```python
import sys, numpy as np
sys.path.insert(0, '.'); sys.path.insert(0, 'gen')
from hipdrv import *
QA1, QB1, QA2, QB2 = 8, 12, 16, 18
K1 = [20, 24]; K2 = [28, 30]; V = [32, 40]
PA, PB = 48, 56
SA = [64, 80]; SB = [96, 112]
OA, OB = 128, 144
NA, NB = 160, 176
def t16(r): return f"v[{r}:{r+15}]"
def t4(r): return f"v[{r}:{r+3}]"
def t2(r): return f"v[{r}:{r+1}]"
def body(opt):
    out = []
    a = out.append
    for i in range(4):
        p = i % 2; n = 1 - p
        cA = t16(NA) if opt.get('negc', True) else "0"
        cB = t16(NB) if opt.get('negc', True) else "0"
        m1 = f"v_mfma_f32_32x32x16_bf16 {t16(SA[n])}, {t4(K1[n])}, {t4(QA1)}, {cA}"
        m2 = f"v_mfma_f32_32x32x8_bf16 {t16(SA[n])}, {t2(K2[n])}, {t2(QA2)}, {t16(SA[n])}"
        m3 = f"v_mfma_f32_32x32x16_bf16 {t16(SB[n])}, {t4(K1[n])}, {t4(QB1)}, {cB}"
        m4 = f"v_mfma_f32_32x32x8_bf16 {t16(SB[n])}, {t2(K2[n])}, {t2(QB2)}, {t16(SB[n])}"
        m5 = f"v_mfma_f32_32x32x16_bf16 {t16(OA)}, {t4(V[p])}, {t4(PA)}, {t16(OA)}"
        m6 = f"v_mfma_f32_32x32x16_bf16 {t16(OA)}, {t4(V[p]+4)}, {t4(PA+4)}, {t16(OA)}"
        m7 = f"v_mfma_f32_32x32x16_bf16 {t16(OB)}, {t4(V[p])}, {t4(PB)}, {t16(OB)}"
        m8 = f"v_mfma_f32_32x32x16_bf16 {t16(OB)}, {t4(V[n]+4)}, {t4(PB+4)}, {t16(OB)}"
        def E(S, lo, hi): return [f"v_exp_f32 v{S+k}, v{S+k}" for k in range(lo, hi)]
        def C(S, P, lo, hi): return [f"v_cvt_pk_bf16_f32 v{P+k}, v{S+2*k}, v{S+2*k+1}" for k in range(lo, hi)]
        valu = (E(SA[p], 0, 9) + C(SA[p], PA, 0, 4) + E(SA[p], 9, 16) + E(SB[p], 0, 1) + C(SA[p], PA, 4, 8)
                + E(SB[p], 1, 9) + C(SB[p], PB, 0, 4) + E(SB[p], 9, 16))
        tail = C(SB[p], PB, 4, 8)
        ins = opt.get('pos', {2: 'm8', 7: 'm1', 13: 'm2', 17: 'm5', 21: 'm3', 28: 'm6', 33: 'm4', 40: 'm7'})
        M = dict(m1=m1, m2=m2, m3=m3, m4=m4, m5=m5, m6=m6, m7=m7, m8=m8)
        if opt.get('nomfma'): M = {k: None for k in M}
        if opt.get('drop'):
            for k in opt['drop']: M[k] = None
        if opt.get('wait', True): a("s_waitcnt lgkmcnt(0)")
        dsl = [f"ds_read_b128 {t4(K1[p])}, v196 offset:{(i+2)*2432}", f"ds_read_b32 v{K2[p]}, v197 offset:{(i+2)*2432}",
               f"ds_read_b128 {t4(V[n])}, v198 offset:{(i+1)*2432}", f"ds_read_b128 {t4(V[n]+4)}, v198 offset:{(i+1)*2432+640}"]
        dspos = opt.get('dspos', {2: [0,1,2,3]})
        for k, v in enumerate(valu):
            if k in ins and M[ins[k]]: a(M[ins[k]])
            if opt.get('ds', True):
                for d in dspos.get(k, []): a(dsl[d])
            a(v)
        if opt.get('nop', True): a("s_nop 0")
        for v in tail: a(v)
    return "\n".join("    " + x for x in out) + "\n"
def kern(name, b, iters=100):
    return f"""
.text
.globl {name}
.p2align 8
.type {name},@function
{name}:
    s_load_dwordx2 s[4:5], s[0:1], 0
    s_waitcnt lgkmcnt(0)
    s_mov_b32 s6, 0x1000000
    s_mov_b32 s7, 0x00020000
    v_lshrrev_b32 v200, 6, v0
    s_lshl_b32 s3, s2, 4
    v_add_u32 v200, s3, v200
    v_lshlrev_b32 v200, 3, v200
""" + "".join(f"    v_mov_b32 v{i}, 0\n" for i in range(1,196)) + f"""
    v_and_b32 v196, 63, v0
    v_lshlrev_b32 v197, 2, v196
    v_lshlrev_b32 v196, 4, v196
    v_mov_b32 v198, v196
    s_mov_b32 s10, {iters}
    s_barrier
    s_memtime s[12:13]
    s_waitcnt lgkmcnt(0)
.p2align 6
L_{name}:
{b}
    s_sub_u32 s10, s10, 1
    s_cmp_lg_u32 s10, 0
    s_cbranch_scc1 L_{name}
    s_memtime s[14:15]
    s_waitcnt lgkmcnt(0)
    s_sub_u32 s14, s14, s12
    s_subb_u32 s15, s15, s13
    v_mov_b32 v202, s14
    v_mov_b32 v203, s15
    v_and_b32 v201, 63, v0
    v_cmp_eq_u32 vcc, 0, v201
    s_and_saveexec_b64 s[16:17], vcc
    buffer_store_dwordx2 v[202:203], v200, s[4:7], 0 offen
    s_endpgm
.section .rodata,"a"
.p2align 6
.amdhsa_kernel {name}
  .amdhsa_next_free_vgpr 208
  .amdhsa_next_free_sgpr 102
  .amdhsa_accum_offset 208
  .amdhsa_group_segment_fixed_size 0
  .amdhsa_kernarg_size 88
  .amdhsa_user_sgpr_count 2
  .amdhsa_user_sgpr_kernarg_segment_ptr 1
  .amdhsa_system_sgpr_workgroup_id_x 1
.end_amdhsa_kernel
"""
tests = {
 'base': {},
 'nods': dict(ds=False, wait=False),
 'nods_nonop': dict(ds=False, wait=False, nop=False),
 'nonegc': dict(negc=False),
 'nomfma': dict(nomfma=True),
 'nomfma_nods': dict(nomfma=True, ds=False, wait=False, nop=False),
 'dsspread': dict(dspos={3:[0], 9:[1], 15:[2], 23:[3]}),
 'dropqk2': dict(drop=['m2','m4']),
 'droppv': dict(drop=['m5','m6','m7','m8']),
 'dropqk': dict(drop=['m1','m2','m3','m4']),
}
if __name__ == '__main__':
    src = '.amdgcn_target "amdgcn-amd-amdhsa--gfx950"\n' + "".join(kern('k_'+n, body(o)) for n, o in tests.items())
    assemble(src, 'mb6.co', [('k_'+n, 208) for n in tests])
    if len(sys.argv) > 1 and sys.argv[1] == 'asm': sys.exit(0)
    m = Module('mb6.co')
    out = Buf(1 << 20)
    for n in tests:
        res = []
        for thr in (256, 512):
            out.memset(0)
            for _ in range(3):
                m.launch('k_'+n, (256,1,1), (thr,1,1), [out.ptr]+[0]*10, lds=160*1024)
            sync()
            r = out.download(np.uint64, 256*16).reshape(256,16)[:, :thr//64]
            res.append("per-iter(1 tile x2q): med %.1f max %.1f -> per wave-iter %.1f" % (np.median(r)/400, r.max()/400, r.max()/400/(thr//256)))
        print("%-14s" % n, res)
```

```python
import sys, numpy as np
sys.path.insert(0, '.')
from mb6 import *
def body2(order, pos, dspos=2, nop=True):
    out = []
    a = out.append
    for i in range(4):
        p = i % 2; n = 1 - p
        M = dict(
         m1=f"v_mfma_f32_32x32x16_bf16 {t16(SA[n])}, {t4(K1[n])}, {t4(QA1)}, {t16(NA)}",
         m2=f"v_mfma_f32_32x32x8_bf16 {t16(SA[n])}, {t2(K2[n])}, {t2(QA2)}, {t16(SA[n])}",
         m3=f"v_mfma_f32_32x32x16_bf16 {t16(SB[n])}, {t4(K1[n])}, {t4(QB1)}, {t16(NB)}",
         m4=f"v_mfma_f32_32x32x8_bf16 {t16(SB[n])}, {t2(K2[n])}, {t2(QB2)}, {t16(SB[n])}",
         m5=f"v_mfma_f32_32x32x16_bf16 {t16(OA)}, {t4(V[p])}, {t4(PA)}, {t16(OA)}",
         m6=f"v_mfma_f32_32x32x16_bf16 {t16(OA)}, {t4(V[p]+4)}, {t4(PA+4)}, {t16(OA)}",
         m7=f"v_mfma_f32_32x32x16_bf16 {t16(OB)}, {t4(V[p])}, {t4(PB)}, {t16(OB)}",
         m8=f"v_mfma_f32_32x32x16_bf16 {t16(OB)}, {t4(V[n]+4)}, {t4(PB+4)}, {t16(OB)}")
        def E(S, lo, hi): return [f"v_exp_f32 v{S+k}, v{S+k}" for k in range(lo, hi)]
        def C(S, P, lo, hi): return [f"v_cvt_pk_bf16_f32 v{P+k}, v{S+2*k}, v{S+2*k+1}" for k in range(lo, hi)]
        valu = order(E, C, SA[p], SB[p])
        a("s_waitcnt lgkmcnt(0)")
        dsl = [f"ds_read_b128 {t4(K1[p])}, v196 offset:{(i+2)*2368}", f"ds_read_b32 v{K2[p]}, v197 offset:{(i+2)*2368}",
               f"ds_read_b128 {t4(V[n])}, v198 offset:{(i+1)*2368}", f"ds_read_b128 {t4(V[n]+4)}, v198 offset:{(i+1)*2368+608}"]
        for k, v in enumerate(valu):
            if k in pos:
                a(M[pos[k]])
                if pos[k] == 'm8':
                    for d in dsl: a(d)
            a(v)
    return "\n".join("    " + x for x in out) + "\n"
cur = lambda E, C, A, B: (E(A,0,9) + C(A,PA,0,4) + E(A,9,16) + E(B,0,1) + C(A,PA,4,8) + E(B,1,9) + C(B,PB,0,4) + E(B,9,16) + ["s_nop 0"] + C(B,PB,4,8))
def fine(E, C, A, B):
    r = []
    ea = E(A,0,16); eb = E(B,0,16); ca = C(A,PA,0,8); cb = C(B,PB,0,8)
    r += ea[0:4]
    for k in range(6): r += ea[4+2*k:6+2*k] + [ca[k]]
    r += eb[0:2] + [ca[6]] + eb[2:4] + [ca[7]]
    for k in range(6): r += eb[4+2*k:6+2*k] + [cb[k]]
    r += ["s_nop 0", cb[6], cb[7]]
    return r
def late(E, C, A, B):
    return E(A,0,16) + E(B,0,2) + C(A,PA,0,8) + E(B,2,16) + ["s_nop 0"] + C(B,PB,0,8)
T = {
 'cur': body2(cur, {2:'m8', 7:'m1', 13:'m2', 17:'m5', 21:'m3', 28:'m6', 33:'m4', 40:'m7'}),
 'cur_b': body2(cur, {2:'m8', 6:'m1', 11:'m2', 16:'m5', 22:'m3', 28:'m6', 34:'m4', 40:'m7'}),
 'fine': body2(fine, {2:'m8', 7:'m1', 12:'m2', 19:'m5', 24:'m3', 31:'m6', 36:'m4', 42:'m7'}),
 'late': body2(late, {2:'m8', 7:'m1', 12:'m2', 17:'m3', 23:'m4', 29:'m5', 34:'m6'}),
}
src = '.amdgcn_target "amdgcn-amd-amdhsa--gfx950"\n' + "".join(kern('k_'+n, b) for n, b in T.items())
assemble(src, 'mb13.co', [('k_'+n, 208) for n in T])
if len(sys.argv) > 1 and sys.argv[1] == 'asm': sys.exit(0)
m = Module('mb13.co')
out = Buf(1 << 20)
for rep in range(2):
  for n in T:
    res = []
    for thr in (256, 512):
        out.memset(0)
        for _ in range(3):
            m.launch('k_'+n, (256,1,1), (thr,1,1), [out.ptr]+[0]*10, lds=160*1024)
        sync()
        r = out.download(np.uint64, 256*16).reshape(256,16)[:, :thr//64]
        res.append("per wave-iter %.1f" % (r.max()/400/(thr//256)))
    print("%-10s" % n, res)
```
